```python
import torch

def _softmax(x, axis=-1):
    return torch.softmax(x, dim=axis)
def _gelu(x):
    return torch.nn.functional.gelu(x, approximate="tanh")
def _silu(x):
    return torch.nn.functional.silu(x)
def _sigmoid(x):
    return torch.sigmoid(x)
def _layernorm(x, axis=-1, eps=1e-5):
    m = x.mean(dim=axis, keepdim=True)
    v = x.var(dim=axis, keepdim=True, unbiased=False)
    return (x - m) / torch.sqrt(v + eps)
def _scatter_add(tgt, idx, src, axis=0):
    return tgt.clone().index_add_(axis, idx, src)
def _segment_sum(src, seg, n):
    out = torch.zeros((n,) + src.shape[1:], dtype=src.dtype)
    return out.index_add_(0, seg, src)
def _pad(x, pw):
    flat = tuple(v for pair in reversed(pw) for v in pair)
    return torch.nn.functional.pad(x, flat)

kernel_name = 'parallel_sum__sliding_block_cached__dense_activation_silu__decode'

def setup_inputs():

    _w = (lambda a: (lambda t: t.to(torch.bfloat16) if t.is_floating_point() else t)(torch.as_tensor(a)))
    def _A_setup():
        B, Sq, D = 4, 1, 512
        Hq, Hkv, Sk, Dh = 32, 32, 8192, 128
        assert Hq % Hkv == 0, (Hq, Hkv)
        return {
            "x": _w((lambda *s: torch.randn(*s, dtype=torch.bfloat16) * 0.05)(B, Sq, D)),
            "k_cache": _w((lambda *s: torch.randn(*s, dtype=torch.bfloat16) * 3.2)(B, Hkv, Sk, Dh)),
            "v_cache": _w((lambda *s: torch.randn(*s, dtype=torch.bfloat16) * 0.8)(B, Hkv, Sk, Dh)),
            "wq": _w((lambda *s: torch.randn(*s, dtype=torch.bfloat16) * 3.2)(D, Hq * Dh) * (D ** -0.5)),
            "wo": _w((lambda *s: torch.randn(*s, dtype=torch.bfloat16) * 0.8)(Hq * Dh, D) * ((Hq * Dh) ** -0.5)),
        }
    _A_in = _A_setup()

    def _B_setup():
        B, S, D, F = 4, 1, 512, 1376
        return {
            "x": _w((lambda *s: torch.randn(*s, dtype=torch.bfloat16) * 0.05)(B, S, D)),
            "w1": _w((lambda *s: torch.randn(*s, dtype=torch.bfloat16) * 3.2)(D, F) * (D ** -0.5)),
            "w2": _w((lambda *s: torch.randn(*s, dtype=torch.bfloat16) * 0.4)(F, D) * (F ** -0.5)),
        }
    _B_in = _B_setup()

    return {
        "A_x": _A_in["x"],
        "A_k_cache": _A_in["k_cache"],
        "A_v_cache": _A_in["v_cache"],
        "A_wq": _A_in["wq"],
        "A_wo": _A_in["wo"],
        "B_x": _B_in["x"],
        "B_w1": _B_in["w1"],
        "B_w2": _B_in["w2"],
    }

def reference(A_x, A_k_cache, A_v_cache, A_wq, A_wo, B_x, B_w1, B_w2):
    def _A_ref(x, k_cache, v_cache, wq, wo):
        B, Sq, D = x.shape
        Hq, Dh = 32, 128
        Hkv, Sk = k_cache.shape[1], k_cache.shape[2]
        W = min(4096, max(256, Sk // 4))
        rep = Hq // Hkv
        q = (lambda x, *d: x.permute(*d))((x @ wq).reshape(B, Sq, Hq, Dh), 0, 2, 1, 3)
        k = (lambda x, n, axis: torch.repeat_interleave(x, n, dim=axis))(k_cache[:, :, Sk - W:, :], rep, axis=1)
        v = (lambda x, n, axis: torch.repeat_interleave(x, n, dim=axis))(v_cache[:, :, Sk - W:, :], rep, axis=1)
        scores = torch.einsum("bhqd,bhkd->bhqk", q, k) * (Dh ** -0.5)
        p = _softmax(scores, axis=-1)
        o = torch.einsum("bhqk,bhkd->bhqd", p, v)
        return (lambda x, *d: x.permute(*d))(o, 0, 2, 1, 3).reshape(B, Sq, Hq * Dh) @ wo

    def _B_ref(x, w1, w2):
        h = torch.einsum("bsd,df->bsf", x, w1)
        h = _silu(h)
        out = torch.einsum("bsf,fd->bsd", h, w2)
        return out

    x = A_x
    xn = _layernorm(x, axis=-1)
    return x + _A_ref(xn, A_k_cache, A_v_cache, A_wq, A_wo) + _B_ref(xn, B_w1, B_w2)
```

```python
import struct, sys
NAME = "parallel_sum__sliding_block_cached__dense_activation_silu__decode"
def f2u(x): return struct.unpack("<I", struct.pack("<f", x))[0]

class E:
    def __init__(s):
        s.L = []; s.vm = []; s.uid = 0
    def __call__(s, t): s.L.append("  " + t)
    def lab(s, t): s.L.append(t + ":")
    def c(s, t): s.L.append("  ; " + t)
    def vmem(s, text, tag):
        s.L.append("  " + text); s.vm.append(tag)
    def wait(s, tag):
        i = len(s.vm) - 1 - s.vm[::-1].index(tag)
        n = len(s.vm) - 1 - i
        s(f"s_waitcnt vmcnt({min(n,63)})")
    def lgkm0(s): s("s_waitcnt lgkmcnt(0)")
    def nop(s, n): s(f"s_nop {n}")
    def newlab(s, p):
        s.uid += 1; return f"L_{p}{s.uid}"

HEADER = """; Fused decode step: out = x + Attn(LN(x)) + FFN(LN(x)), sliding window W = 2048 of the 8192-key cache.
; Hand-offs through d_ws are 8-byte {value, tag} granules; tag = (word left in d_ws by the previous launch) + 1.
"""

DEF = dict(nt="nt", wnt="", sleep=1, DA=5, DA_ffn=5, hl1cost=0, DB=3, DW=3, DW2=3, DAV=12, NL=32, PRE=76, ffn=True, prioB=3, bk_issue=1, p_issue=4, v_issue=3,
           xch_after=8, preA=5, qsleep=2, rot=True, tr=0, earlyf=1, ospin=0, gat_ffn=0, gat_noffn=2, fasto=1, xch_last=1, maskpoll=1, pollers=1, gat_at=5, vtouch=1, jmap=2)

class Sched:
    def __init__(s, e, seq, slot_of, prereq, emit):
        s.e, s.seq, s.slot_of, s.prereq, s.emit = e, seq, slot_of, prereq, emit
        s.pos = {x: i for i, x in enumerate(seq)}
        s.ip = 0; s.done = set()
    def issue_upto(s, p):
        while s.ip <= p and s.ip < len(s.seq):
            x = s.seq[s.ip]
            pr = s.prereq(x)
            if pr is not None and pr not in s.done: break
            s.emit(x); s.ip += 1
    def issue_n(s, n): s.issue_upto(s.ip + n - 1)
    def need(s, x, look):
        s.issue_upto(s.pos[x])
        assert s.ip > s.pos[x], (x, s.seq[s.ip], s.prereq(s.seq[s.ip]))
        s.issue_upto(s.pos[x] + look)

def gen(ts=False, opt=None):
    o = dict(DEF)
    if opt: o.update(opt)
    NT = o["nt"]; WNT = o["wnt"]
    e = E()
    sW = 3
    sH, sB, sHalf, sJ, sJJ, sU = 30,31,32,33,34,35
    SK, SV, SWQ, SWO, SW1, SW2 = 36,40,44,48,52,56
    SQX = 36
    sX, sY, sPoll, sMyS, sPaS, sOut = 60,62,64,66,68,70
    sOff = 72; sWB = 73; sRot = 74; sLK = 75
    sScale, sLog2e, sMaskHi, sCnt = 76,77,78,79
    sNonce = 43
    TSR = list(range(80,102,2)) + list(range(8,24,2))
    tsn = {"A": 0, "B": 0}; tsnames = {"A": [], "B": []}
    role = ["A"]
    def stamp(name):
        if ts:
            r = TSR[tsn[role[0]]]
            e(f"s_memrealtime s[{r}:{r+1}]"); tsn[role[0]] += 1; tsnames[role[0]].append(name)
    def srd(r): return f"s[{r}:{r+3}]"
    def sp(r): return f"s[{r}:{r+1}]"
    L_XN, L_PQ = 0x0000, 0x1000
    L_H, L_ST, L_G, L_F, L_QP = 0x3000, 0x3080, 0x30C0, 0x3100, 0x3400
    L_OP = 0x3800
    F_XN, F_PQ, F_Q, F_H, F_ST, F_O = [L_F + 4*k for k in range(6)]
    L_K = 0x4000
    WS_STATS = 0x100000
    WS_QX = 0x180000
    WS_NONCE = 0x2F0000
    WS_TS = 0x300000
    SLOT0 = 64
    NL = o["NL"]
    def slot(i): return SLOT0 + 4*i
    def sl(i): return f"v[{slot(i)}:{slot(i)+3}]"

    e.L.append(HEADER.rstrip("\n"))
    e.L.append(f"; @launch grid=(256,1,1) block=(512,1,1) lds={L_K + 4*NL*1024}")
    e.L.append('.amdgcn_target "amdgcn-amd-amdhsa--gfx950"')
    e.L.append(".text")
    e.L.append(f".globl {NAME}_kernel")
    e.L.append(".p2align 8")
    e.L.append(f".type {NAME}_kernel,@function")
    e.L.append(f"{NAME}_kernel:")
    if ts: e("s_memrealtime s[80:81]"); tsn["A"] = tsn["B"] = 1; tsnames["A"].append("start"); tsnames["B"].append("start")
    if o.get("dbgts"):
        e("s_memrealtime s[96:97]"); e("s_memtime s[98:99]")
    e("s_cmp_ge_u32 s2, 256")
    e("s_cbranch_scc1 L_end")
    e("s_load_dwordx4 s[4:7], s[0:1], 8") if False else None
    e("s_load_dwordx2 s[10:11], s[0:1], 8")
    e("s_load_dwordx2 s[12:13], s[0:1], 16")
    e("v_lshrrev_b32 v1, 6, v0")
    e("v_and_b32 v0, 63, v0")
    e(f"v_readfirstlane_b32 s{sW}, v1")
    e("s_and_b32 s4, s2, 7")
    e("s_lshr_b32 s5, s2, 3")
    e("s_lshr_b32 s6, s5, 3")
    e(f"s_lshl_b32 s{sH}, s4, 2")
    e(f"s_add_u32 s{sH}, s{sH}, s6")
    e(f"s_lshr_b32 s{sB}, s5, 1")
    e(f"s_and_b32 s{sB}, s{sB}, 3")
    e(f"s_and_b32 s{sHalf}, s5, 1")
    e("v_lshlrev_b32 v1, 4, v0")
    e(f"s_cmp_ge_u32 s{sW}, 4")
    e("s_cbranch_scc1 L_B")
    def late_decode():
        e("s_and_b32 s4, s2, 7"); e("s_lshr_b32 s5, s2, 3"); e("s_lshr_b32 s6, s5, 3")
        e(f"s_and_b32 s{sU}, s5, 7")
        jm = o.get("jmap", 0)
        if jm == 1:
            e("s_mov_b32 s7, 0x2130"); e("s_lshl_b32 s6, s6, 2"); e("s_lshr_b32 s6, s7, s6"); e("s_and_b32 s6, s6, 3")
        e(f"s_lshl_b32 s6, s6, 1")
        e(f"s_add_u32 s6, s6, s{sHalf}")
        if jm == 4:
            e("s_xor_b32 s4, s4, 4")
        if jm in (3, 4):
            e("s_and_b32 s7, s4, 3"); e("s_lshl_b32 s6, s6, 2"); e("s_add_u32 s6, s6, s7")
            e("s_lshr_b32 s7, s4, 2"); e("s_lshl_b32 s7, s7, 5")
            e(f"s_add_u32 s{sJ}, s6, s7")
        elif jm == 2:
            e("s_mul_i32 s7, s4, 43"); e("s_lshr_b32 s7, s7, 3")
            e("s_add_u32 s5, s4, 1"); e("s_mul_i32 s5, s5, 43"); e("s_lshr_b32 s5, s5, 3")
            e(f"s_add_u32 s{sJ}, s7, s6")
            e(f"s_cmp_lt_u32 s{sJ}, s5"); e(f"s_cselect_b32 s{sJ}, s{sJ}, 63")
        else:
            e(f"s_lshl_b32 s6, s6, 3")
            e(f"s_add_u32 s{sJ}, s6, s4")
        e(f"s_lshl_b32 s{sJJ}, s{sH}, 1")
        e(f"s_add_u32 s{sJJ}, s{sJJ}, s{sHalf}")
        e(f"s_mov_b32 s{sScale}, {f2u(128**-0.5):#x}")
        e(f"s_mov_b32 s{sLog2e}, 0x3fb8aa3b")
        e(f"s_mov_b32 s{sMaskHi}, 0xffff0000")

    def gemv_regs(r, acc, fL, fH):
        for j in range(4):
            e(f"v_dot2c_f32_bf16 v{acc+2*j}, v{r+j}, v{fL}")
            e(f"v_dot2c_f32_bf16 v{acc+2*j+1}, v{r+j}, v{fH}")
    def gemv_load(s, acc, fL, fH): gemv_regs(slot(s), acc, fL, fH)
    def forms(pair, odd, fL, fH):
        if not odd:
            e(f"v_and_b32 v{fL}, 0xffff, v{pair}")
            e(f"v_lshlrev_b32 v{fH}, 16, v{pair}")
        else:
            e(f"v_lshrrev_b32 v{fL}, 16, v{pair}")
            e(f"v_and_b32 v{fH}, s{sMaskHi}, v{pair}")
    def treduce8(acc, lead=3):
        e.nop(lead)
        for c in range(4): e(f"v_permlane32_swap_b32 v{acc+c}, v{acc+4+c}")
        e.nop(1)
        for c in (0,2,1,3): e(f"v_add_f32 v{acc+c}, v{acc+c}, v{acc+4+c}")
        e.nop(1)
        e(f"v_permlane16_swap_b32 v{acc}, v{acc+2}")
        e(f"v_permlane16_swap_b32 v{acc+1}, v{acc+3}")
        e.nop(1)
        e(f"v_add_f32 v{acc}, v{acc}, v{acc+2}")
        e(f"v_add_f32 v{acc+1}, v{acc+1}, v{acc+3}")
    def crossrow(r, t, op):
        e(f"v_mov_b32 v{t}, v{r}")
        e.nop(1)
        e(f"v_permlane16_swap_b32 v{r}, v{t}")
        e.nop(1)
        e(f"{op} v{r}, v{r}, v{t}")
        e(f"v_mov_b32 v{t}, v{r}")
        e.nop(1)
        e(f"v_permlane32_swap_b32 v{r}, v{t}")
        e.nop(1)
        e(f"{op} v{r}, v{r}, v{t}")
    def allreduce(r, t, op="v_add_f32"):
        for rot in (8,4,2,1):
            e.nop(1)
            e(f"{op}_dpp v{r}, v{r}, v{r} row_ror:{rot} row_mask:0xf bank_mask:0xf")
        crossrow(r, t, op)
    def lds_signal(addr, z, one):
        e(f"v_mov_b32 v{z}, 0"); e(f"v_mov_b32 v{one}, 1")
        e("s_mov_b64 exec, 1")
        e(f"ds_add_u32 v{z}, v{one} offset:{addr}")
        e("s_mov_b64 exec, -1")
    def lds_spin(addr, val, z, t, sleep=1):
        l = e.newlab("spin"); d = e.newlab("spun")
        e(f"v_mov_b32 v{z}, 0")
        e(f"s_mov_b32 s{sCnt}, 0x400000")
        e.lab(l)
        e(f"ds_read_b32 v{t}, v{z} offset:{addr}")
        e.lgkm0()
        e(f"v_readfirstlane_b32 s4, v{t}")
        e(f"s_cmp_ge_u32 s4, {val}"); e(f"s_cbranch_scc1 {d}")
        e(f"s_sub_u32 s{sCnt}, s{sCnt}, 1"); e(f"s_cmp_eq_u32 s{sCnt}, 0"); e(f"s_cbranch_scc1 {d}")
        if sleep: e(f"s_sleep {sleep}")
        e(f"s_branch {l}")
        e.lab(d)

    role[0] = "A"
    e.c("==== A waves: K/V stream")
    vLane, vOffK = 0, 1
    Q = 2; ACC = 6; T = 14; SP = 32
    RING = 44 if NL else 48
    DA = o["DA"]; STG = slot(44)
    PRE = min(o["PRE"], NL + RING)
    e(f"s_lshl_b32 s4, s{sB}, 5"); e(f"s_add_u32 s4, s4, s{sH}"); e("s_lshl_b32 s4, s4, 21")
    e(f"s_lshl_b32 s5, s{sHalf}, 18"); e("s_add_u32 s4, s4, s5"); e("s_add_u32 s4, s4, 0x180000")
    GR_ = o.get("gran", 4)
    e(f"s_mul_i32 s5, s{sW}, {GR_*1024}"); e("s_add_u32 s4, s4, s5")
    e(f"s_mov_b32 s{SK+2}, 0x40000"); e(f"s_mov_b32 s{SK+3}, 0x20000"); e(f"s_mov_b32 s{SV+2}, 0x40000"); e(f"s_mov_b32 s{SV+3}, 0x20000")
    e(f"s_mul_i32 s{sLK}, s{sW}, {NL*1024}"); e(f"s_add_u32 s{sLK}, s{sLK}, {L_K}")
    if ts: e("s_load_dwordx2 s[28:29], s[0:1], 80"); e("s_load_dwordx2 s[26:27], s[0:1], 72")
    e("s_waitcnt lgkmcnt(0)")
    e(f"s_add_u32 s{SK}, s10, s4"); e(f"s_addc_u32 s{SK+1}, s11, 0")
    e(f"s_add_u32 s{SV}, s12, s4"); e(f"s_addc_u32 s{SV+1}, s13, 0")
    stamp("kernarg")
    seqA = [("K", j) for j in range(64)] + [("V", j) for j in range(64)]
    def aidx(x): return x[1] + (64 if x[0] == "V" else 0)
    def inlds(x): return aidx(x) < NL
    def slotA(x): return (aidx(x) - NL) % RING
    def preA(x):
        i = aidx(x) - RING
        return None if i < NL else seqA[i]
    last_off = [None]
    def emitA(x):
        k, j = x
        if inlds(x):
            last_off[0] = None
            e(f"s_add_u32 m0, s{sLK}, {j*1024}")
            e(f"s_mov_b32 s{sOff}, {(j//GR_)*GR_*4096 + (j%GR_)*1024}")
            e.vmem(f"buffer_load_dwordx4 v{vOffK}, {srd(SK)}, s{sOff} offen {NT} lds", f"{k}{j}")
        else:
            off = (j//GR_)*GR_*4096 + (j%GR_)*1024
            if last_off[0] != off - off % 4096:
                e(f"s_mov_b32 s{sOff}, {off - off % 4096}"); last_off[0] = off - off % 4096
            e.vmem(f"buffer_load_dwordx4 {sl(slotA(x))}, v{vOffK}, {srd(SK if k=='K' else SV)}, s{sOff} offen offset:{off % 4096} {NT}", f"{k}{j}")
    SA = Sched(e, seqA, slotA, preA, emitA)
    if o.get("vtouch"):
        e("s_mov_b64 exec, 1")
        e(f"buffer_load_dword v{T+12}, v{vOffK}, {srd(SV)}, 0 offen {NT}")
        e("s_mov_b64 exec, -1")
    if o["preA"]: SA.issue_n(o["preA"])
    late_decode()
    e("s_barrier")
    DA2 = o.get("DA_ffn"); DA3 = o.get("DA_slow")
    if DA2 == DA and not DA3: DA2 = None
    if DA2:
        DA3 = DA3 or DA2
        if o.get("xcdcls"):
            e("s_getreg_b32 s4, hwreg(HW_REG_XCC_ID)"); e("s_and_b32 s4, s4, 15"); e(f"s_cmp_ge_u32 s4, {o['xcdcls']}"); e("s_cselect_b32 s4, 1, 0")
        elif o.get("wavecls"):
            e(f"s_and_b32 s4, s{sW}, {o['wavecls']}"); e("s_cmp_lg_u32 s4, 0"); e("s_cselect_b32 s4, 1, 0")
        else:
            e(f"s_cmp_lt_u32 s{sJ}, 43"); e("s_cselect_b32 s4, 1, 0")
        if o.get("hl1cost", 1):
            e(f"s_and_b32 s5, s{sH}, 3"); e("s_cmp_eq_u32 s5, 1"); e("s_cselect_b32 s5, 1, 0"); e("s_add_u32 s4, s4, s5")
        e("s_cmp_ge_u32 s4, 1"); e("s_cselect_b32 vcc_lo, -1, 0")
        e("s_cmp_ge_u32 s4, 2"); e("s_cselect_b32 vcc_hi, -1, 0")
        e("s_mov_b32 s6, vcc_lo"); e("s_mov_b32 s7, vcc_hi")
    while SA.ip < PRE:
        SA.issue_n(1)
        if DA2:
            if SA.ip > DA - 1:
                l1 = e.newlab("w"); l2 = e.newlab("w")
                if DA3 != DA2:
                    e("s_cmp_lg_u32 s7, 0"); e(f"s_cbranch_scc1 {l2}")
                e("s_cmp_lg_u32 s6, 0"); e(f"s_cbranch_scc1 {l1}")
                e(f"s_waitcnt vmcnt({DA-1})"); e.lab(l1)
                e(f"s_waitcnt vmcnt({DA2-1})"); e.lab(l2)
                e(f"s_waitcnt vmcnt({DA3-1})")
        else:
            win = o["DA0"] if (o.get("DA0") and SA.ip <= o.get("N0", 24)) else DA
            if SA.ip > win - 1: e(f"s_waitcnt vmcnt({win-1})")
        if SA.ip == 32: stamp("iss32")
    for k in range(8): e(f"v_mov_b32 v{ACC+k}, 0")
    vLK = T+13
    e(f"v_add_u32 v{vLK}, s{sLK}, v{vOffK}")
    stamp("issued")
    lds_spin(F_Q, 1, T, T+1, o["qsleep"])
    stamp("qready")
    e(f"v_and_b32 v{T}, 15, v{vLane}"); e(f"v_lshlrev_b32 v{T}, 4, v{T}")
    e(f"ds_read_b128 v[{Q}:{Q+3}], v{T} offset:{L_QP}")
    e.lgkm0()
    DD = T; R = T+4; MX = T+10
    e(f"v_mov_b32 v{MX}, 0xff800000")
    def stage(g):
        e.wait(f"K{4*g+3}")
        for t in range(4): e(f"ds_read_b128 v[{STG+4*t}:{STG+4*t+3}], v{vLK} offset:{(4*g+t)*1024}")
    def procK(g, nxt):
        x = ("K", 4*g+3)
        if inlds(x):
            e.lgkm0()
            ss = [STG + 4*t for t in range(4)]
        else:
            e.wait(f"K{4*g+3}")
            ss = [slot(slotA(("K", 4*g+t))) for t in range(4)]
        for k in range(4):
            for t in range(4):
                if k == 0: e(f"v_dot2_f32_bf16 v{DD+t}, v{ss[t]+k}, v{Q+k}, 0")
                else: e(f"v_dot2c_f32_bf16 v{DD+t}, v{ss[t]+k}, v{Q+k}")
        if nxt is not None: stage(nxt)
        for rot in (8,4,2,1):
            for t in range(4):
                e(f"v_add_f32_dpp v{DD+t}, v{DD+t}, v{DD+t} row_ror:{rot} row_mask:0xf bank_mask:0xf")
        for h2 in range(2):
            r = R+3*h2+2
            e(f"v_cvt_pk_bf16_f32 v{r}, v{DD+2*h2}, v{DD+2*h2+1}")
        for h2 in range(2):
            a, b_, r = R+3*h2, R+3*h2+1, R+3*h2+2
            e(f"v_lshlrev_b32 v{a}, 16, v{r}"); e(f"v_and_b32 v{b_}, s{sMaskHi}, v{r}")
        for h2 in range(2):
            a, b_ = R+3*h2, R+3*h2+1
            e(f"v_mul_f32 v{a}, s{sScale}, v{a}"); e(f"v_mul_f32 v{b_}, s{sScale}, v{b_}")
        for h2 in range(2):
            a, b_ = R+3*h2, R+3*h2+1
            e(f"v_max3_f32 v{MX}, v{a}, v{b_}, v{MX}")
            e(f"v_cvt_pk_bf16_f32 v{SP+2*g+h2}, v{a}, v{b_}")
        for t in range(4): SA.done.add(("K", 4*g+t))
    ng = NL // 4
    order = list(range(ng, 16)) + list(range(ng))
    if ng == 16: stage(order[0])
    for n, g in enumerate(order):
        x = ("K", 4*g+3)
        SA.need(x, DA if SA.pos[x] + DA >= SA.ip else 0)
        nxt = order[n+1] if n + 1 < 16 and order[n+1] < ng else None
        procK(g, nxt)
        SA.issue_n(o["bk_issue"])
    stamp("Kdone")
    crossrow(MX, R, "v_max_f32")
    e(f"v_cvt_pk_bf16_f32 v{MX}, v{MX}, v{MX}"); e(f"v_and_b32 v{MX}, s{sMaskHi}, v{MX}")
    NM = T+11; LS = T+12; MWV = T+10
    e(f"v_mul_f32 v{NM}, 0xbfb8aa3b, v{MX}")
    e(f"v_mov_b32 v{LS}, 0")
    for k in range(32):
        a, b_ = (R, R+1) if k % 2 == 0 else (R+2, R+3)
        e(f"v_lshlrev_b32 v{a}, 16, v{SP+k}"); e(f"v_and_b32 v{b_}, s{sMaskHi}, v{SP+k}")
        e(f"v_fma_f32 v{a}, v{a}, s{sLog2e}, v{NM}"); e(f"v_fma_f32 v{b_}, v{b_}, s{sLog2e}, v{NM}")
        e(f"v_exp_f32 v{a}, v{a}"); e(f"v_exp_f32 v{b_}, v{b_}")
        e.nop(0)
        e(f"v_cvt_pk_bf16_f32 v{SP+k}, v{a}, v{b_}")
        e(f"v_add_f32 v{a}, v{a}, v{b_}"); e(f"v_add_f32 v{LS}, v{LS}, v{a}")
        if k % o["p_issue"] == o["p_issue"] - 1: SA.issue_n(1)
    crossrow(LS, R, "v_add_f32")
    e(f"s_lshl_b32 s4, s{sW}, 3"); e(f"v_mov_b32 v{R}, s4")
    e(f"v_mov_b32 v{R+2}, v{MX}"); e(f"v_mov_b32 v{R+3}, v{LS}")
    e("s_mov_b64 exec, 1")
    e(f"ds_write_b64 v{R}, v[{R+2}:{R+3}] offset:{L_ST}")
    e("s_mov_b64 exec, -1")
    lds_signal(F_ST, R, R+1)
    stamp("Pdone")
    fL, fH = T, T+1
    def procV(j):
        x = ("V", j)
        DAV = o.get("DAV", DA)
        SA.need(x, DAV)
        if SA.pos[x] + DAV < SA.ip - 1 and j % o["v_issue"] == o["v_issue"] - 1: SA.issue_n(1)
        e.wait(f"V{j}")
        a, b_ = (fL, fH) if j % 2 == 0 else (fL+2, fH+2)
        forms(SP + (j>>1), j & 1, a, b_)
        gemv_load(slotA(x), ACC, a, b_)
        SA.done.add(x)
    GR = T+4; FW_ = T+9
    def compute_f():
        e(f"v_sub_f32 v{FW_}, v{MWV}, v{GR}"); e(f"v_mul_f32 v{FW_}, s{sLog2e}, v{FW_}"); e(f"v_exp_f32 v{FW_}, v{FW_}")
        e.nop(0)
        e(f"v_mul_f32 v{FW_}, v{FW_}, v{GR+1}")
    EJ = 56
    OA, OZ, OONE = T+11, T+12, T+13
    e(f"v_lshlrev_b32 v{OA}, 2, v{vLane}"); e(f"s_lshl_b32 s4, s{sW}, 9"); e(f"v_add_u32 v{OA}, s4, v{OA}")
    e(f"v_mov_b32 v{OZ}, 0"); e(f"v_mov_b32 v{OONE}, 1")
    for j in range(64):
        if o["earlyf"] and j == EJ:
            e(f"v_mov_b32 v{T+8}, 0")
            e(f"ds_read_b96 v[{GR}:{GR+2}], v{T+8} offset:{L_G}")
        procV(j)
        if o["earlyf"] and j == EJ:
            e.lgkm0()
            e(f"v_readfirstlane_b32 s5, v{GR+2}")
            compute_f()
        if j == 31: stamp("V32")
    assert SA.ip == len(seqA)
    stamp("Vdone")
    if o["earlyf"]:
        e("s_cmp_eq_u32 s5, 1"); e("s_cbranch_scc1 L_fok")
    e(f"v_mov_b32 v{T+8}, 0")
    e(f"s_mov_b32 s{sCnt}, 0x400000")
    e.lab("L_gwait")
    e(f"ds_read_b96 v[{GR}:{GR+2}], v{T+8} offset:{L_G}")
    e.lgkm0()
    e(f"v_readfirstlane_b32 s4, v{GR+2}")
    e("s_cmp_eq_u32 s4, 1"); e("s_cbranch_scc1 L_gok")
    e(f"s_sub_u32 s{sCnt}, s{sCnt}, 1"); e(f"s_cmp_eq_u32 s{sCnt}, 0"); e("s_cbranch_scc1 L_gok")
    e("s_sleep 1")
    e("s_branch L_gwait")
    e.lab("L_gok")
    compute_f()
    e.lab("L_fok")
    e.nop(2)
    for k in range(8): e(f"v_mul_f32 v{ACC+k}, v{ACC+k}, v{FW_}")
    treduce8(ACC, 1)
    e(f"ds_write_b32 v{OA}, v{ACC} offset:{L_OP}")
    e(f"ds_write_b32 v{OA}, v{ACC+1} offset:{L_OP+256}")
    e("s_mov_b64 exec, 1")
    e(f"ds_add_u32 v{OZ}, v{OONE} offset:{F_O}")
    e("s_mov_b64 exec, -1")
    stamp("Osig")
    e("s_branch L_fin")

    role[0] = "B"
    e.vm = []
    e.lab("L_B")
    e.c("==== B waves: LN, projections, FFN, hand-offs")
    e("s_load_dwordx16 s[8:23], s[0:1], 0")
    e("s_load_dwordx4 s[24:27], s[0:1], 64")
    e("s_load_dwordx2 s[28:29], s[0:1], 80")
    if o["prioB"]: e(f"s_setprio {o['prioB']}")
    late_decode()
    vOffQ, vOffW1, vOffO, vOffW2, vXres, vOffY = 2,3,4,5,6,7
    ACC = 8; ACCH = 16; FQ = 24; FW = 40; T = 44
    t0,t1,t2,t3 = T,T+1,T+2,T+3
    DB = o["DB"]; DW = o["DW"]
    e(f"s_sub_u32 s{sWB}, s{sW}, 4")
    e(f"v_lshrrev_b32 v{T}, 4, v0")
    e(f"v_and_b32 v{T+1}, 15, v0")
    e(f"v_lshlrev_b32 v{vOffQ}, 15, v{T}")
    e(f"v_lshl_add_u32 v{vOffQ}, v{T+1}, 4, v{vOffQ}")
    e(f"v_lshlrev_b32 v{vOffW2}, 10, v{T}")
    e(f"v_lshl_add_u32 v{vOffW2}, v{T+1}, 4, v{vOffW2}")
    e(f"v_and_b32 v{T+2}, 1, v{T}"); e(f"v_lshlrev_b32 v{T+2}, 2, v{T+2}")
    e(f"v_lshrrev_b32 v{T+3}, 1, v{T}"); e(f"v_add_u32 v{T+2}, v{T+2}, v{T+3}")
    e(f"v_lshlrev_b32 v{vOffO}, 10, v{T+2}")
    e(f"v_lshl_add_u32 v{vOffO}, v{T+1}, 4, v{vOffO}")
    e(f"v_lshrrev_b32 v{T+2}, 5, v0")
    e(f"v_lshlrev_b32 v{vOffY}, 6, v{T+1}")
    e(f"v_lshl_add_u32 v{vOffY}, v{T+2}, 5, v{vOffY}")
    e(f"v_bfe_u32 v{T+3}, v0, 4, 1"); e(f"v_lshl_add_u32 v{vOffY}, v{T+3}, 4, v{vOffY}")
    if o.get("ylin"): e(f"v_mov_b32 v{vOffY}, v1")
    e(f"v_lshrrev_b32 v{T}, 2, v0")
    e(f"v_mul_u32_u24 v{vOffW1}, {8*2752}, v{T}")
    e(f"v_and_b32 v{T+1}, 3, v0")
    e(f"v_lshl_add_u32 v{vOffW1}, v{T+1}, 4, v{vOffW1}")
    e(f"v_and_b32 v{T}, 3, v0"); e(f"v_lshlrev_b32 v{T}, 2, v{T}")
    e(f"v_lshl_add_u32 v{vXres}, v{T+2}, 1, v{T}")
    for k in range(4): e(f"v_mov_b32 v{T+8+k}, 0")
    for k in range(4): e(f"v_mov_b32 v{T+12+k}, -1")
    for k in range(8): e(f"v_mov_b32 v{ACC+k}, 0")
    for k in range(8): e(f"v_mov_b32 v{ACCH+k}, 0")
    e(f"ds_write_b128 v1, v[{T+8}:{T+11}] offset:{L_H}")
    e("s_waitcnt lgkmcnt(0)")
    stamp("kernarg")
    e(f"s_add_u32 s40, s28, {WS_NONCE:#x}"); e("s_addc_u32 s41, s29, 0")
    e(f"s_load_dword s{sNonce}, s[40:41], 0")
    e(f"s_lshl_b32 s4, s{sB}, 6"); e(f"s_add_u32 s4, s4, s{sJJ}"); e("s_lshl_b32 s4, s4, 12")
    e(f"s_lshl_b32 s5, s{sWB}, 10"); e("s_add_u32 s4, s4, s5")
    e(f"s_add_u32 s{sY}, s28, s4"); e(f"s_addc_u32 s{sY+1}, s29, 0")
    e("s_lshl_b32 s4, s2, 7"); e(f"s_add_u32 s4, s4, {WS_STATS:#x}")
    e(f"s_add_u32 s{sMyS}, s28, s4"); e(f"s_addc_u32 s{sMyS+1}, s29, 0")
    e(f"s_lshl_b32 s4, s{sH}, 15"); e(f"s_add_u32 s4, s4, {WS_QX:#x}")
    e(f"s_add_u32 s{SQX}, s28, s4"); e(f"s_addc_u32 s{SQX+1}, s29, 0"); e(f"s_mov_b32 s{SQX+2}, 0x8000"); e(f"s_mov_b32 s{SQX+3}, 0x20000")
    sQO = 74
    e(f"s_lshl_b32 s4, s{sU}, 2"); e(f"s_add_u32 s4, s4, s{sWB}"); e(f"s_lshl_b32 s{sQO}, s4, 10")
    e(f"s_lshl_b32 s4, s{sWB}, 10")
    e(f"s_add_u32 s6, s8, s4"); e(f"s_addc_u32 s7, s9, 0")
    XR = FQ
    e.vmem(f"global_load_dwordx4 v[{XR}:{XR+3}], v1, s[6:7]", "X0")
    e(f"s_lshl_b32 s4, s{sU}, 2"); e(f"s_add_u32 s4, s4, s{sWB}"); e("s_lshl_b32 s4, s4, 17")
    e(f"s_lshl_b32 s5, s{sH}, 8"); e("s_add_u32 s4, s4, s5")
    e(f"s_add_u32 s{SWQ}, s14, s4"); e(f"s_addc_u32 s{SWQ+1}, s15, 0"); e(f"s_mov_b32 s{SWQ+2}, 0x20000"); e(f"s_mov_b32 s{SWQ+3}, 0x20000")
    WQS = [0,1,2,3]
    for i in range(4):
        e(f"s_mov_b32 s{sOff}, {i*8192}")
        e.vmem(f"buffer_load_dwordx4 {sl(WQS[i])}, v{vOffQ}, {srd(SWQ)}, s{sOff} offen {o.get('wqnt', WNT)}", f"WQ{i}")
    WOS = list(range(16,48))
    seqB = []
    if o["ffn"]: seqB += [("W1", i) for i in range(8)] + [("W2", i) for i in range(8)]
    seqB += [("WO", i) for i in range(32)]
    def slotB(x):
        k, j = x
        if k == "W1": return j
        if k == "W2": return 8 + j
        if k == "WO": return WOS[j]
    def preB(x): return None
    def emitB(x):
        k, j = x; s = slotB(x)
        if k == "W1":
            e(f"s_mov_b32 s{sOff}, {j*2752}")
            e.vmem(f"buffer_load_dwordx4 {sl(s)}, v{vOffW1}, {srd(SW1)}, s{sOff} offen {WNT}", f"W1{j}")
        elif k == "W2":
            e(f"s_mov_b32 s{sOff}, {j*4096}")
            e.vmem(f"buffer_load_dwordx4 {sl(s)}, v{vOffW2}, {srd(SW2)}, s{sOff} offen {WNT}", f"W2{j}")
        elif k == "WO":
            e(f"s_mov_b32 s{sOff}, {(8*(j&15) + 2*(j>>4))*1024}")
            e.vmem(f"buffer_load_dwordx4 {sl(s)}, v{vOffO}, {srd(SWO)}, s{sOff} offen {WNT}", f"WO{j}")
    SB = Sched(e, seqB, slotB, preB, emitB)
    e("s_barrier")
    e(f"s_lshl_b32 s4, s{sB}, 10")
    e(f"s_add_u32 s{sX}, s8, s4"); e(f"s_addc_u32 s{sX+1}, s9, 0")
    e("s_xor_b32 s4, s2, 8"); e("s_lshl_b32 s4, s4, 7"); e(f"s_add_u32 s4, s4, {WS_STATS:#x}")
    e(f"s_add_u32 s{sPaS}, s28, s4"); e(f"s_addc_u32 s{sPaS+1}, s29, 0")
    e(f"s_lshl_b32 s4, s{sJJ}, 4")
    e(f"s_lshl_b32 s5, s{sB}, 10"); e("s_add_u32 s4, s4, s5")
    e(f"s_add_u32 s{sOut}, s24, s4"); e(f"s_addc_u32 s{sOut+1}, s25, 0")
    e(f"s_lshl_b32 s4, s{sH}, 17"); e(f"s_lshl_b32 s5, s{sWB}, 8"); e("s_add_u32 s4, s4, s5")
    e(f"s_add_u32 s{SWO}, s16, s4"); e(f"s_addc_u32 s{SWO+1}, s17, 0"); e(f"s_mov_b32 s{SWO+2}, {0 if o.get('nowo') else 0x20000}"); e(f"s_mov_b32 s{SWO+3}, 0x20000")
    e(f"s_cmp_lt_u32 s{sJ}, 43")
    e(f"s_cselect_b32 s75, 1, 0")
    e(f"s_cselect_b32 s{sJ}, s{sJ}, 0")
    e(f"s_cselect_b32 s{SW1+2}, {128*2752:#x}, 0")
    e(f"s_cselect_b32 s{SW2+2}, 0x8000, 0")
    e(f"s_lshl_b32 s4, s{sJ}, 6"); e(f"s_mul_i32 s5, s{sWB}, {128*2752}"); e("s_add_u32 s4, s4, s5")
    e(f"s_add_u32 s{SW1}, s20, s4"); e(f"s_addc_u32 s{SW1+1}, s21, 0"); e(f"s_mov_b32 s{SW1+3}, 0x20000")
    e(f"s_lshl_b32 s4, s{sJ}, 15"); e(f"s_lshl_b32 s5, s{sWB}, 8"); e("s_add_u32 s4, s4, s5")
    e(f"s_add_u32 s{SW2}, s22, s4"); e(f"s_addc_u32 s{SW2+1}, s23, 0"); e(f"s_mov_b32 s{SW2+3}, 0x20000")
    if o.get("ylin"):
        e(f"s_lshl_b32 s4, s{sB}, 18"); e(f"s_lshr_b32 s5, s{sJJ}, 4"); e("s_lshl_b32 s5, s5, 10"); e("s_add_u32 s4, s4, s5")
        e(f"s_and_b32 s5, s{sJJ}, 15"); e("s_lshl_b32 s5, s5, 4"); e("s_add_u32 s4, s4, s5")
    else:
        e(f"s_lshl_b32 s4, s{sB}, 18"); e(f"s_lshl_b32 s5, s{sJJ}, 6"); e("s_add_u32 s4, s4, s5")
    e(f"s_add_u32 s{sPoll}, s28, s4"); e(f"s_addc_u32 s{sPoll+1}, s29, 0")
    if o.get("btouch"):
        e("s_mov_b64 exec, 1")
        e(f"v_mov_b32 v{T+6}, 0")
        e.vmem(f"buffer_load_dword v{slot(31)}, v{T+6}, {srd(SWO)}, 0 offen", "TCH0")
        e.vmem(f"buffer_load_dword v{slot(31)}, v{T+6}, {srd(SW1)}, 0 offen", "TCH1")
        e.vmem(f"buffer_load_dword v{slot(31)}, v{T+6}, {srd(SW2)}, 0 offen", "TCH2")
        e.vmem(f"global_load_dword v{slot(31)}, v{T+6}, {sp(sPoll)}", "TCH3")
        e.vmem(f"global_load_dword v{slot(31)}, v{T+6}, {sp(sOut)}", "TCH4")
        e("s_mov_b64 exec, -1")
    if o.get("warm"):
        WD = slot(24)
        e(f"s_lshl_b32 s4, s{sU}, 2"); e(f"s_add_u32 s4, s4, s{sWB}"); e("s_lshl_b32 s4, s4, 12")
        e(f"s_lshl_b32 s5, s{sWB}, 8"); e("s_sub_u32 s4, s4, s5")
        for r in range(4):
            e(f"s_add_u32 s{sOff}, s4, {r*1024}")
            e.vmem(f"buffer_load_dwordx4 v[{WD+4*r}:{WD+4*r+3}], v1, {srd(SWO)}, s{sOff} offen {WNT}", f"WARM{r}")
        if o["warm"] > 1:
            e(f"s_lshl_b32 s4, s{sB}, 2"); e(f"s_add_u32 s4, s4, s{sWB}"); e("s_lshl_b32 s4, s4, 11")
            e(f"s_lshl_b32 s5, s{sWB}, 8"); e("s_sub_u32 s4, s4, s5")
            for r in range(2):
                e(f"s_add_u32 s{sOff}, s4, {r*1024}")
                e.vmem(f"buffer_load_dwordx4 v[{WD+16+4*r}:{WD+16+4*r+3}], v1, {srd(SW2)}, s{sOff} offen {WNT}", f"WARM{4+r}")
            for r in range(2):
                e(f"s_lshl_b32 s4, s{sB}, 1"); e(f"s_add_u32 s4, s4, {r}"); e(f"s_mul_i32 s{sOff}, s4, 2752")
                e.vmem(f"buffer_load_dwordx4 v[{WD+24+4*r}:{WD+24+4*r+3}], v{vOffW1}, {srd(SW1)}, s{sOff} offen {WNT}", f"WARM{6+r}")
    e.c("LayerNorm (bf16 rounding steps as in the reference)")
    e.wait("X0")
    stamp("Xin")
    XF = FQ+4
    for k in range(4):
        e(f"v_lshlrev_b32 v{XF+2*k}, 16, v{XR+k}")
        e(f"v_and_b32 v{XF+2*k+1}, s{sMaskHi}, v{XR+k}")
    e(f"v_add_f32 v{t0}, v{XF}, v{XF+1}"); e(f"v_add_f32 v{t1}, v{XF+2}, v{XF+3}")
    e(f"v_add_f32 v{t2}, v{XF+4}, v{XF+5}"); e(f"v_add_f32 v{t3}, v{XF+6}, v{XF+7}")
    e(f"v_add_f32 v{t0}, v{t0}, v{t1}"); e(f"v_add_f32 v{t2}, v{t2}, v{t3}"); e(f"v_add_f32 v{t0}, v{t0}, v{t2}")
    allreduce(t0, t1)
    e(f"v_mul_f32 v{t0}, 0x3b000000, v{t0}")
    Dd = T+4
    for k in range(8): e(f"v_sub_f32 v{Dd+k}, v{XF+k}, v{t0}")
    e(f"v_mul_f32 v{t2}, v{Dd}, v{Dd}")
    for k in range(1,8): e(f"v_fmac_f32 v{t2}, v{Dd+k}, v{Dd+k}")
    allreduce(t2, t1)
    e(f"v_mul_f32 v{t2}, 0x3b000000, v{t2}")
    e(f"v_cvt_pk_bf16_f32 v{t1}, v{t0}, v{t2}")
    e(f"v_lshlrev_b32 v{t0}, 16, v{t1}")
    e(f"v_and_b32 v{t2}, s{sMaskHi}, v{t1}")
    e(f"v_add_f32 v{t2}, {f2u(1e-5):#x}, v{t2}")
    e(f"v_cvt_pk_bf16_f32 v{t2}, v{t2}, v{t2}")
    e(f"v_and_b32 v{t2}, s{sMaskHi}, v{t2}")
    e(f"v_sqrt_f32 v{t2}, v{t2}")
    e.nop(0)
    e(f"v_cvt_pk_bf16_f32 v{t2}, v{t2}, v{t2}")
    e(f"v_and_b32 v{t2}, s{sMaskHi}, v{t2}")
    e(f"v_rcp_f32 v{t3}, v{t2}")
    XN = 60
    for k in range(4):
        a, b_, qa, qb = Dd, Dd+1, Dd+2, Dd+3
        e(f"v_sub_f32 v{a}, v{XF+2*k}, v{t0}"); e(f"v_sub_f32 v{b_}, v{XF+2*k+1}, v{t0}")
        e(f"v_cvt_pk_bf16_f32 v{a}, v{a}, v{b_}")
        e(f"v_and_b32 v{b_}, s{sMaskHi}, v{a}"); e(f"v_lshlrev_b32 v{a}, 16, v{a}")
        e(f"v_mul_f32 v{qa}, v{a}, v{t3}"); e(f"v_mul_f32 v{qb}, v{b_}, v{t3}")
        e(f"v_fma_f32 v{a}, -v{qa}, v{t2}, v{a}"); e(f"v_fma_f32 v{b_}, -v{qb}, v{t2}, v{b_}")
        e(f"v_fma_f32 v{qa}, v{a}, v{t3}, v{qa}"); e(f"v_fma_f32 v{qb}, v{b_}, v{t3}, v{qb}")
        e(f"v_cvt_pk_bf16_f32 v{XN+k}, v{qa}, v{qb}")
    e(f"s_lshl_b32 s4, s{sWB}, 10"); e(f"v_add_u32 v{t0}, s4, v1")
    e(f"ds_write_b128 v{t0}, v[{XN}:{XN+3}] offset:{L_XN}")
    lds_signal(F_XN, t1, t2)
    stamp("LN")
    lds_spin(F_XN, 4, t1, t2, 1)
    if o.get("fine"): stamp("xn4")
    e(f"s_lshl_b32 s4, s{sU}, 2"); e(f"s_add_u32 s4, s4, s{sWB}"); e("s_lshl_b32 s4, s4, 5")
    e(f"v_lshrrev_b32 v{t0}, 4, v0"); e(f"v_lshlrev_b32 v{t0}, 3, v{t0}"); e(f"v_add_u32 v{t0}, s4, v{t0}")
    for bb in range(4): e(f"ds_read_b64 v[{FQ+2*bb}:{FQ+2*bb+1}], v{t0} offset:{L_XN+1024*bb}")
    e(f"s_lshl_b32 s4, s{sWB}, 8"); e(f"s_lshl_b32 s5, s{sB}, 10"); e("s_add_u32 s4, s4, s5")
    e(f"v_lshrrev_b32 v{t1}, 2, v0"); e(f"v_lshlrev_b32 v{t1}, 4, v{t1}"); e(f"v_add_u32 v{t1}, s4, v{t1}")
    e(f"ds_read_b128 v[{FW}:{FW+3}], v{t1} offset:{L_XN}")
    A4 = slot(16)
    for k in range(32): e(f"v_mov_b32 v{A4+k}, 0")
    e.lgkm0()
    e(f"s_add_u32 s{sNonce}, s{sNonce}, 1")
    e.wait("WQ3")
    fL, fH = T, T+1
    n = 0
    e.c("partial q projection of 16 rows for all four batch rows")
    for i in range(4):
        for bb in range(4):
            a, b_ = (fL, fH) if n % 2 == 0 else (fL+2, fH+2); n += 1
            forms(FQ + 2*bb + (i>>1), i & 1, a, b_)
            gemv_load(WQS[i], A4 + 8*bb, a, b_)
    if o.get("fine"): stamp("gemv")
    e.nop(2)
    for bb in range(4): treduce8(A4 + 8*bb, 0)
    e(f"v_and_b32 v{t0}, 15, v0"); e(f"v_lshlrev_b32 v{t0}, 5, v{t0}")
    e(f"v_lshrrev_b32 v{t1}, 5, v0"); e(f"v_lshl_add_u32 v{t0}, v{t1}, 4, v{t0}")
    e(f"v_bfe_u32 v{t2}, v0, 4, 1"); e(f"v_lshl_add_u32 v{t0}, v{t2}, 3, v{t0}")
    e(f"s_lshl_b32 s4, s{sWB}, 11"); e(f"v_add_u32 v{t0}, s4, v{t0}")
    for bb in range(4):
        e(f"ds_write_b64 v{t0}, v[{A4+8*bb}:{A4+8*bb+1}] offset:{L_PQ+512*bb}")
    lds_signal(F_PQ, t1, t2)
    if o.get("fine"): stamp("pqsig")
    SB.issue_n(2)
    lds_spin(F_PQ, 4, t1, t2, 1)
    e(f"s_lshl_b32 s5, s{sWB}, 9"); e(f"v_lshlrev_b32 v{t0}, 3, v0"); e(f"v_add_u32 v{t0}, s5, v{t0}")
    GP = 24
    for w4 in range(4): e(f"ds_read_b64 v[{GP+4+2*w4}:{GP+5+2*w4}], v{t0} offset:{L_PQ+2048*w4}")
    e(f"v_mov_b32 v{GP+1}, s{sNonce}"); e(f"v_mov_b32 v{GP+3}, s{sNonce}")
    e.lgkm0()
    e(f"v_add_f32 v{GP+4}, v{GP+4}, v{GP+6}"); e(f"v_add_f32 v{GP+5}, v{GP+5}, v{GP+7}")
    e(f"v_add_f32 v{GP+8}, v{GP+8}, v{GP+10}"); e(f"v_add_f32 v{GP+9}, v{GP+9}, v{GP+11}")
    e(f"v_add_f32 v{GP}, v{GP+4}, v{GP+8}"); e(f"v_add_f32 v{GP+2}, v{GP+5}, v{GP+9}")
    e.vmem(f"buffer_store_dwordx4 v[{GP}:{GP+3}], v1, {srd(SQX)}, s{sQO} offen sc1", "QPUB")
    stamp("qpub")
    def gather(tag):
        e(f"s_cmp_eq_u32 s{sWB}, 0"); e(f"s_cbranch_scc0 L_nogat{tag}")
        if tag != "a":
            e(f"s_cmp_eq_u32 s75, {1 if tag == 'f' else 0}"); e(f"s_cbranch_scc0 L_nogat{tag}")
        GQ = slot(40)
        e(f"s_mov_b32 s{sCnt}, 0x20000")
        if o.get("maskgat", 1):
            GM = [8, 10, 12, 14, 16, 18, 20, 22] if not ts else [8, 10, 12, 14, 16, 18, 20, 22]
            GM = [84, 86, 88, 90, 92, 94, 96, 98] if not ts else None
            if ts: GM = [8, 10, 12, 14, 16, 18, 20, 22]
            for u in range(8): e(f"s_mov_b64 s[{GM[u]}:{GM[u]+1}], -1")
            e.lab(f"L_qpoll{tag}")
            for u in range(8):
                e(f"s_mov_b64 exec, s[{GM[u]}:{GM[u]+1}]")
                e(f"s_cbranch_execz L_qskip{tag}{u}")
                e(f"s_lshl_b32 s4, s{sB}, 10"); e(f"s_add_u32 s{sOff}, s4, {u*4096}")
                e(f"buffer_load_dwordx4 v[{GQ+4*u}:{GQ+4*u+3}], v1, {srd(SQX)}, s{sOff} offen sc1")
                e.lab(f"L_qskip{tag}{u}")
            e("s_mov_b64 exec, -1")
            e("s_waitcnt vmcnt(0)")
            for u in range(8):
                e(f"v_xor_b32 v{t1}, s{sNonce}, v{GQ+4*u+1}"); e(f"v_xor_b32 v{t2}, s{sNonce}, v{GQ+4*u+3}"); e(f"v_or_b32 v{t1}, v{t1}, v{t2}")
                e(f"v_cmp_ne_u32 s[{GM[u]}:{GM[u]+1}], 0, v{t1}")
            e.nop(1)
            e(f"s_or_b64 s[4:5], s[{GM[0]}:{GM[0]+1}], s[{GM[1]}:{GM[1]+1}]")
            for u in range(2,8): e(f"s_or_b64 s[4:5], s[4:5], s[{GM[u]}:{GM[u]+1}]")
            e(f"s_cbranch_scc0 L_qok{tag}")
            e(f"s_sub_u32 s{sCnt}, s{sCnt}, 1"); e(f"s_cmp_eq_u32 s{sCnt}, 0"); e(f"s_cbranch_scc1 L_qok{tag}")
            e(f"s_sleep {o.get('gsleep', 8)}")
            e(f"s_branch L_qpoll{tag}")
        else:
            e.lab(f"L_qpoll{tag}")
            for u in range(8):
                e(f"s_lshl_b32 s4, s{sB}, 10"); e(f"s_add_u32 s{sOff}, s4, {u*4096}")
                e(f"buffer_load_dwordx4 v[{GQ+4*u}:{GQ+4*u+3}], v1, {srd(SQX)}, s{sOff} offen sc1")
            e("s_waitcnt vmcnt(0)")
            e(f"v_mov_b32 v{t0}, 0")
            for u in range(8):
                e(f"v_xor_b32 v{t1}, s{sNonce}, v{GQ+4*u+1}"); e(f"v_xor_b32 v{t2}, s{sNonce}, v{GQ+4*u+3}")
                e(f"v_or3_b32 v{t0}, v{t0}, v{t1}, v{t2}")
            e(f"v_cmp_ne_u32 vcc, 0, v{t0}")
            e.nop(1)
            e("s_cmp_eq_u64 vcc, 0"); e(f"s_cbranch_scc1 L_qok{tag}")
            e(f"s_sub_u32 s{sCnt}, s{sCnt}, 1"); e(f"s_cmp_eq_u32 s{sCnt}, 0"); e(f"s_cbranch_scc1 L_qok{tag}")
            e(f"s_sleep {o.get('gsleep', 8)}")
            e(f"s_branch L_qpoll{tag}")
        e.lab(f"L_qok{tag}")
        for u in range(1,8):
            e(f"v_add_f32 v{GQ}, v{GQ}, v{GQ+4*u}"); e(f"v_add_f32 v{GQ+2}, v{GQ+2}, v{GQ+4*u+2}")
        e(f"v_cvt_pk_bf16_f32 v{t0}, v{GQ}, v{GQ+2}")
        e(f"v_lshlrev_b32 v{t1}, 2, v0")
        e(f"ds_write_b32 v{t1}, v{t0} offset:{L_QP}")
        lds_signal(F_Q, t1, t2)
        e.lab(f"L_nogat{tag}")
    for k in range(8): e(f"v_mov_b32 v{ACC+k}, 0")
    e(f"s_lshl_b32 s4, s{sJJ}, 4")
    e(f"s_add_u32 s6, s{sX}, s4"); e(f"s_addc_u32 s7, s{sX+1}, 0")
    e.vmem(f"global_load_ushort v{vXres}, v{vXres}, s[6:7]", "XR")
    def throttled(upto, dw=None):
        while SB.ip <= upto and SB.ip < len(seqB):
            SB.issue_n(1)
            e(f"s_waitcnt vmcnt({(dw or DW)-1})")
    throttled(o.get("gat_at", 5) - 1)
    gather("a")
    stamp("qgat")
    if o["ffn"]:
        throttled(SB.pos[("W1", 7)] + DW - 1)
        e.wait("W17")
        for i in range(8):
            a, b_ = (fL, fH) if i % 2 == 0 else (fL+2, fH+2)
            forms(FW + (i>>1), i & 1, a, b_)
            gemv_load(slotB(("W1", i)), ACCH, a, b_)
        treduce8(ACCH)
        e.nop(1)
        for r in (ACCH, ACCH+1): e(f"v_add_f32_dpp v{r}, v{r}, v{r} row_ror:8 row_mask:0xf bank_mask:0xf")
        e.nop(1)
        for r in (ACCH, ACCH+1): e(f"v_add_f32_dpp v{r}, v{r}, v{r} row_ror:4 row_mask:0xf bank_mask:0xf")
        e(f"v_and_b32 v{t3}, 3, v0"); e(f"v_lshlrev_b32 v{t3}, 3, v{t3}")
        e(f"v_lshrrev_b32 v{t1}, 5, v0"); e(f"v_lshl_add_u32 v{t3}, v{t1}, 2, v{t3}")
        e(f"v_bfe_u32 v{t2}, v0, 4, 1"); e(f"v_lshl_add_u32 v{t3}, v{t2}, 6, v{t3}")
        e("s_mov_b32 exec_lo, 0x000f000f"); e("s_mov_b32 exec_hi, 0x000f000f")
        e(f"ds_add_f32 v{t3}, v{ACCH} offset:{L_H}")
        e(f"ds_add_f32 v{t3}, v{ACCH+1} offset:{L_H+32}")
        e("s_mov_b64 exec, -1")
        lds_signal(F_H, t1, t2)
    stamp("hsig")
    if o["ffn"]:
        throttled(SB.pos[("WO", 1)])
        lds_spin(F_H, 4, t1, t2, 2)
        HF = 24; G = 32
        e(f"v_lshrrev_b32 v{t1}, 4, v0"); e(f"v_lshlrev_b32 v{t1}, 5, v{t1}")
        e(f"ds_read_b128 v[{HF}:{HF+3}], v{t1} offset:{L_H}")
        e(f"ds_read_b128 v[{HF+4}:{HF+7}], v{t1} offset:{L_H+16}")
        e.lgkm0()
        for k in range(4): e(f"v_cvt_pk_bf16_f32 v{G+k}, v{HF+2*k}, v{HF+2*k+1}")
        for k in range(4):
            e(f"v_lshlrev_b32 v{HF+2*k}, 16, v{G+k}"); e(f"v_and_b32 v{HF+2*k+1}, s{sMaskHi}, v{G+k}")
        for i in range(8): e(f"v_mul_f32 v{G+i}, 0xbfb8aa3b, v{HF+i}")
        for i in range(8): e(f"v_exp_f32 v{G+i}, v{G+i}")
        e.nop(0)
        for i in range(8): e(f"v_add_f32 v{G+i}, 1.0, v{G+i}")
        for i in range(8): e(f"v_rcp_f32 v{G+i}, v{G+i}")
        e.nop(0)
        for i in range(8): e(f"v_mul_f32 v{G+i}, v{HF+i}, v{G+i}")
        e.wait("W27")
        for i in range(8):
            a, b_ = (fL, fH) if i % 2 == 0 else (fL+2, fH+2)
            e(f"v_cvt_pk_bf16_f32 v{a}, v{G+i}, 0"); e(f"v_cvt_pk_bf16_f32 v{b_}, 0, v{G+i}")
            gemv_load(slotB(("W2", i)), ACC, a, b_)
    stamp("ffn")
    throttled(len(seqB) if o["xch_last"] else SB.pos[("WO", o["xch_after"]-1)], o.get("DW2"))
    PM, PL, CNT, PS = 60, 61, 62, 58
    R = T+4
    e(f"s_cmp_eq_u32 s{sWB}, 1"); e("s_cbranch_scc0 L_nog")
    lds_spin(F_ST, 4, t1, t2, 4)
    e(f"v_mov_b32 v{T}, 0")
    for k in range(2): e(f"ds_read_b128 v[{24+4*k}:{24+4*k+3}], v{T} offset:{L_ST+16*k}")
    e.lgkm0()
    ms = [24, 26, 28, 30]
    e(f"v_max3_f32 v{PM}, v{ms[0]}, v{ms[1]}, v{ms[2]}"); e(f"v_max_f32 v{PM}, v{PM}, v{ms[3]}")
    for k in range(4): e(f"v_sub_f32 v{ms[k]}, v{ms[k]}, v{PM}")
    for k in range(4): e(f"v_mul_f32 v{ms[k]}, s{sLog2e}, v{ms[k]}")
    for k in range(4): e(f"v_exp_f32 v{ms[k]}, v{ms[k]}")
    e.nop(0)
    e(f"v_mul_f32 v{PL}, v{ms[0]}, v{ms[0]+1}")
    for k in range(1,4): e(f"v_fmac_f32 v{PL}, v{ms[k]}, v{ms[k]+1}")
    e("s_mov_b64 exec, 1")
    e(f"v_mov_b32 v{R}, v{PM}"); e(f"v_mov_b32 v{R+1}, s{sNonce}"); e(f"v_mov_b32 v{R+2}, v{PL}"); e(f"v_mov_b32 v{R+3}, s{sNonce}")
    e(f"global_store_dwordx4 v{T}, v[{R}:{R+3}], {sp(sMyS)} sc1")
    e(f"s_mov_b32 s{sCnt}, 0x20000")
    PX = 24
    e.lab("L_ppoll")
    e(f"global_load_dwordx4 v[{PX}:{PX+3}], v{T}, {sp(sPaS)} sc1")
    e("s_waitcnt vmcnt(0)")
    e(f"v_xor_b32 v{R+4}, s{sNonce}, v{PX+1}"); e(f"v_xor_b32 v{R+5}, s{sNonce}, v{PX+3}"); e(f"v_or_b32 v{R+4}, v{R+4}, v{R+5}")
    e.nop(0)
    e(f"v_readfirstlane_b32 s4, v{R+4}")
    e("s_cmp_eq_u32 s4, 0"); e("s_cbranch_scc1 L_pokk")
    e(f"s_sub_u32 s{sCnt}, s{sCnt}, 1"); e(f"s_cmp_eq_u32 s{sCnt}, 0"); e("s_cbranch_scc1 L_pokk")
    e("s_sleep 4")
    e("s_branch L_ppoll")
    e.lab("L_pokk")
    e(f"v_mov_b32 v{PS}, v{PX}"); e(f"v_mov_b32 v{PS+1}, v{PX+2}")
    e.lab("L_pok")
    e(f"v_max_f32 v{R}, v{PM}, v{PS}")
    e(f"v_sub_f32 v{R+1}, v{PM}, v{R}"); e(f"v_sub_f32 v{R+2}, v{PS}, v{R}")
    e(f"v_mul_f32 v{R+1}, s{sLog2e}, v{R+1}"); e(f"v_mul_f32 v{R+2}, s{sLog2e}, v{R+2}")
    e(f"v_exp_f32 v{R+1}, v{R+1}"); e(f"v_exp_f32 v{R+2}, v{R+2}")
    e.nop(0)
    e(f"v_mul_f32 v{R+3}, v{PL}, v{R+1}"); e(f"v_fmac_f32 v{R+3}, v{PS+1}, v{R+2}")
    e(f"v_rcp_f32 v{R+4}, v{R+3}")
    e.nop(0)
    e(f"v_fma_f32 v{R+5}, -v{R+3}, v{R+4}, 1.0"); e(f"v_fma_f32 v{R+1}, v{R+5}, v{R+4}, v{R+4}")
    e(f"v_mov_b32 v{R+2}, 1"); e(f"v_mov_b32 v{R+4}, 0")
    e(f"ds_write_b64 v{R+4}, v[{R}:{R+1}] offset:{L_G}")
    e(f"ds_write_b32 v{R+4}, v{R+2} offset:{L_G+8}")
    e("s_mov_b64 exec, -1")
    e.lab("L_nog")
    stamp("Gdone")
    throttled(len(seqB), o.get("DW2"))
    assert SB.ip == len(seqB)
    home = {}
    e("s_waitcnt vmcnt(0)")
    e(f"s_mov_b32 s4, 0x05040100"); e(f"s_mov_b32 s5, 0x07060302")
    free = 52
    for k in range(16):
        a, b_ = slot(WOS[2*k]), slot(WOS[2*k+1])
        for j in range(4): e(f"v_perm_b32 v{free+j}, v{b_+j}, v{a+j}, s4")
        for j in range(4): e(f"v_perm_b32 v{b_+j}, v{b_+j}, v{a+j}, s5")
        home[k] = (free, b_); free = a
    stamp("WOrdy")
    e(f"v_lshlrev_b32 v62, 3, v0")
    VP = 56
    e(f"v_lshrrev_b32 v{VP}, 2, v0"); e(f"v_lshlrev_b32 v{VP}, 12, v{VP}")
    e(f"v_and_b32 v{VP+1}, 3, v0"); e(f"v_lshl_add_u32 v{VP}, v{VP+1}, {8 if o.get('ylin') else 4}, v{VP}")
    for k in range(1,4): e(f"v_add_u32 v{VP+k}, {k*65536}, v{VP}")
    e(f"v_and_b32 v60, 3, v0"); e(f"v_lshlrev_b32 v60, 2, v60")
    e(f"v_lshrrev_b32 v61, 5, v0"); e(f"v_lshl_add_u32 v60, v61, 1, v60")
    e(f"v_lshlrev_b32 v61, 16, v{vXres}")
    if o.get("yperm"):
        e("v_lshrrev_b32 v63, 2, v0"); e("v_bfe_u32 v47, v0, 1, 1"); e("v_lshl_add_u32 v63, v47, 5, v63")
        e("v_and_b32 v47, 1, v0"); e("v_lshl_add_u32 v63, v47, 4, v63"); e("v_lshlrev_b32 v63, 2, v63")
    lds_spin(F_O, 4, t1, t2, o["ospin"])
    stamp("Ordy")
    OF = 16
    for w4 in range(4): e(f"ds_read_b64 v[{OF+2*w4}:{OF+2*w4+1}], v62 offset:{L_OP+512*w4}")
    e.lgkm0()
    e(f"v_add_f32 v{OF}, v{OF}, v{OF+2}"); e(f"v_add_f32 v{OF+1}, v{OF+1}, v{OF+3}")
    e(f"v_add_f32 v{OF+4}, v{OF+4}, v{OF+6}"); e(f"v_add_f32 v{OF+5}, v{OF+5}, v{OF+7}")
    e(f"v_add_f32 v{OF}, v{OF}, v{OF+4}"); e(f"v_add_f32 v{OF+1}, v{OF+1}, v{OF+5}")
    e(f"v_cvt_pk_bf16_f32 v{OF}, v{OF}, v{OF+1}")
    e.nop(1)
    for k in range(16):
        lo, hi = home[k]
        for j in range(4):
            e(f"v_dot2c_f32_bf16_dpp v{ACC+2*j}, v{OF}, v{lo+j} row_newbcast:{k} row_mask:0xf bank_mask:0xf")
            e(f"v_dot2c_f32_bf16_dpp v{ACC+2*j+1}, v{OF}, v{hi+j} row_newbcast:{k} row_mask:0xf bank_mask:0xf")
    Y = ACC
    treduce8(Y)
    if o.get("yperm"):
        e(f"ds_bpermute_b32 v{Y+4}, v63, v{Y}"); e(f"ds_bpermute_b32 v{Y+6}, v63, v{Y+1}")
        e(f"v_mov_b32 v{Y+5}, s{sNonce}"); e(f"v_mov_b32 v{Y+7}, s{sNonce}")
        e.lgkm0()
        e(f"global_store_dwordx4 v1, v[{Y+4}:{Y+7}], {sp(sY)} sc1")
    else:
        e(f"v_mov_b32 v{Y+2}, v{Y+1}"); e(f"v_mov_b32 v{Y+1}, s{sNonce}"); e(f"v_mov_b32 v{Y+3}, s{sNonce}")
        e(f"global_store_dwordx4 v{vOffY}, v[{Y}:{Y+3}], {sp(sY)} sc1")
    stamp("pub")
    if o["pollers"] == 1:
        e(f"s_cmp_eq_u32 s{sWB}, 2"); e("s_cbranch_scc0 L_fin")
    elif o["pollers"] == 2:
        e(f"s_cmp_ge_u32 s{sWB}, 2"); e("s_cbranch_scc0 L_fin")
    elif o["pollers"] == 3:
        e(f"s_cmp_eq_u32 s{sWB}, 1"); e("s_cbranch_scc1 L_fin")
    PA = 64
    e(f"s_mov_b32 s{sCnt}, 0x20000")
    if o["maskpoll"]:
        MK = [44, 46, 48, 50]
        for k in range(4): e(f"s_mov_b64 s[{MK[k]}:{MK[k]+1}], -1")
        e.lab("L_ypoll")
        for k in range(4):
            e(f"s_mov_b64 exec, s[{MK[k]}:{MK[k]+1}]")
            e(f"s_cbranch_execz L_yskip{k}")
            e(f"global_load_dwordx4 v[{PA+4*k}:{PA+4*k+3}], v{VP+k}, {sp(sPoll)} sc1")
            e.lab(f"L_yskip{k}")
        e("s_mov_b64 exec, -1")
        e("s_waitcnt vmcnt(0)")
        for k in range(4):
            e(f"v_xor_b32 v53, s{sNonce}, v{PA+4*k+1}"); e(f"v_xor_b32 v54, s{sNonce}, v{PA+4*k+3}"); e(f"v_or_b32 v53, v53, v54")
            e(f"v_cmp_ne_u32 s[{MK[k]}:{MK[k]+1}], 0, v53")
        e.nop(1)
        e(f"s_or_b64 s[4:5], s[{MK[0]}:{MK[0]+1}], s[{MK[1]}:{MK[1]+1}]"); e(f"s_or_b64 s[6:7], s[{MK[2]}:{MK[2]+1}], s[{MK[3]}:{MK[3]+1}]")
        e("s_or_b64 s[4:5], s[4:5], s[6:7]")
        e("s_cbranch_scc0 L_yok")
        e(f"s_sub_u32 s{sCnt}, s{sCnt}, 1"); e(f"s_cmp_eq_u32 s{sCnt}, 0"); e("s_cbranch_scc1 L_yok")
        if o['sleep']: e(f"s_sleep {o['sleep']}")
        e("s_branch L_ypoll")
    else:
        e.lab("L_ypoll")
        for k in range(4): e(f"global_load_dwordx4 v[{PA+4*k}:{PA+4*k+3}], v{VP+k}, {sp(sPoll)} sc1")
        e("s_waitcnt vmcnt(0)")
        e(f"v_mov_b32 v52, 0")
        for k in range(4):
            e(f"v_xor_b32 v53, s{sNonce}, v{PA+4*k+1}"); e(f"v_xor_b32 v54, s{sNonce}, v{PA+4*k+3}"); e(f"v_or3_b32 v52, v52, v53, v54")
        e(f"v_cmp_ne_u32 vcc, 0, v52")
        e.nop(1)
        e("s_cmp_eq_u64 vcc, 0"); e("s_cbranch_scc1 L_yok")
        e(f"s_sub_u32 s{sCnt}, s{sCnt}, 1"); e(f"s_cmp_eq_u32 s{sCnt}, 0"); e("s_cbranch_scc1 L_yok")
        e(f"s_sleep {o['sleep']}")
        e("s_branch L_ypoll")
    e.lab("L_yok")
    stamp("ypoll")
    e(f"v_add_f32 v{PA}, v{PA}, v{PA+4}"); e(f"v_add_f32 v{PA+2}, v{PA+2}, v{PA+6}")
    e(f"v_add_f32 v{PA+8}, v{PA+8}, v{PA+12}"); e(f"v_add_f32 v{PA+10}, v{PA+10}, v{PA+14}")
    e(f"v_add_f32 v{PA}, v{PA}, v{PA+8}"); e(f"v_add_f32 v{PA+2}, v{PA+2}, v{PA+10}")
    e.nop(1)
    e(f"v_permlane32_swap_b32 v{PA}, v{PA+2}")
    e.nop(1)
    e(f"v_add_f32 v{PA}, v{PA}, v{PA+2}")
    e(f"v_mov_b32 v{PA+2}, v{PA}")
    e.nop(1)
    e(f"v_permlane16_swap_b32 v{PA}, v{PA+2}")
    e.nop(1)
    e(f"v_add_f32 v{PA}, v{PA}, v{PA+2}")
    for rot in (8,4):
        e.nop(1)
        e(f"v_add_f32_dpp v{PA}, v{PA}, v{PA} row_ror:{rot} row_mask:0xf bank_mask:0xf")
    e(f"v_add_f32 v{PA}, v{PA}, v61")
    e(f"v_cvt_pk_bf16_f32 v{PA}, v{PA}, v{PA}")
    e("s_mov_b32 exec_lo, 0xf"); e("s_mov_b32 exec_hi, 0xf")
    e(f"global_store_short v60, v{PA}, {sp(sOut)} {o.get('outf', '')}")
    e("s_cmp_eq_u32 s2, 0"); e("s_cbranch_scc0 L_fin")
    e(f"s_cmp_eq_u32 s{sWB}, 2"); e("s_cbranch_scc0 L_fin")
    e("s_mov_b64 exec, 1")
    e(f"s_add_u32 s6, s28, {WS_NONCE:#x}"); e("s_addc_u32 s7, s29, 0")
    e(f"v_mov_b32 v48, 0"); e(f"v_mov_b32 v49, s{sNonce}")
    e(f"global_store_dword v48, v49, s[6:7] sc1")
    e.lab("L_fin")
    if ts:
        e("s_memrealtime s[4:5]")
        e.lgkm0()
        e("v_mov_b32 v10, s4"); e("v_mov_b32 v11, s5")
        n = 15
        e(f"s_lshl_b32 s4, s2, 3"); e(f"s_add_u32 s4, s4, s{sW}"); e("s_lshl_b32 s4, s4, 7"); e(f"s_add_u32 s4, s4, {WS_TS:#x}")
        e("s_add_u32 s4, s28, s4"); e("s_addc_u32 s5, s29, 0")
        e("s_mov_b64 exec, 1")
        e("v_mov_b32 v2, 0")
        for k in range(n):
            e(f"v_mov_b32 v4, s{TSR[k]}"); e(f"v_mov_b32 v5, s{TSR[k]+1}")
            e(f"global_store_dwordx2 v2, v[4:5], s[4:5] offset:{8*k}"); e.nop(1)
        e(f"global_store_dwordx2 v2, v[10:11], s[4:5] offset:{8*15}")
    if o.get("dbg2"):
        e(f"s_cmp_eq_u32 s2, {o['dbg2']}"); e("s_cbranch_scc0 L_end")
        e("s_mov_b64 exec, 1"); e("v_mov_b32 v2, 0")
        e(f"s_cmp_eq_u32 s{sW}, 0"); e("s_cbranch_scc0 L_d1")
        for n_, k in enumerate((2,3,4,5,8)):
            e(f"s_sub_u32 s4, s{TSR[k]}, s80"); e("v_mov_b32 v4, s4"); e(f"global_store_dword v2, v4, s[26:27] offset:{4*(1+n_)}"); e.nop(1)
        e("s_branch L_end")
        e.lab("L_d1")
        e(f"s_cmp_eq_u32 s{sW}, 4"); e("s_cbranch_scc0 L_d2")
        for n_, k in enumerate((1,2,3,4,5,6,7)):
            e(f"s_sub_u32 s4, s{TSR[k]}, s80"); e("v_mov_b32 v4, s4"); e(f"global_store_dword v2, v4, s[26:27] offset:{4*(6+n_)}"); e.nop(1)
        e("s_branch L_end")
        e.lab("L_d2")
        e(f"s_cmp_eq_u32 s{sW}, 6"); e("s_cbranch_scc0 L_end")
        e("s_memrealtime s[4:5]"); e.lgkm0()
        for n_, k in enumerate((9,11)):
            e(f"s_sub_u32 s6, s{TSR[k]}, s80"); e("v_mov_b32 v4, s6"); e(f"global_store_dword v2, v4, s[26:27] offset:{4*(13+n_)}"); e.nop(1)
        e("s_sub_u32 s6, s4, s80"); e("v_mov_b32 v4, s6"); e(f"global_store_dword v2, v4, s[26:27] offset:{4*15}")
    e.lab("L_end")
    e("s_endpgm")
    e.L.append('.section .rodata,"a"')
    e.L.append(".p2align 6")
    e.L.append(f".amdhsa_kernel {NAME}_kernel")
    for l in ("next_free_vgpr 256","next_free_sgpr 102","accum_offset 256","group_segment_fixed_size 0","kernarg_size 88",
              "user_sgpr_count 2","user_sgpr_kernarg_segment_ptr 1","system_sgpr_workgroup_id_x 1"):
        e.L.append("  .amdhsa_" + l)
    e.L.append(".end_amdhsa_kernel")
    return "\n".join(e.L) + "\n", tsnames

if __name__ == "__main__":
    import json
    out = "scratch/"
    V = json.loads(sys.argv[1]) if len(sys.argv) > 1 else {"k6": {}}
    for k, v in V.items():
        s, _ = gen(opt=v); open(out + k + ".s", "w").write(s)
        s, n = gen(ts=True, opt=v); open(out + k + "_ts.s", "w").write(s)
    print("AN=" + ",".join(n["A"]) + " BN=" + ",".join(n["B"]))
```
